```python
import torch

def _softmax(x, axis=-1):
    return torch.softmax(x, dim=axis)
def _gelu(x):
    return torch.nn.functional.gelu(x, approximate="tanh")
def _silu(x):
    return torch.nn.functional.silu(x)
def _sigmoid(x):
    return torch.sigmoid(x)
def _layernorm(x, axis=-1, eps=1e-5):
    m = x.mean(dim=axis, keepdim=True)
    v = x.var(dim=axis, keepdim=True, unbiased=False)
    return (x - m) / torch.sqrt(v + eps)
def _scatter_add(tgt, idx, src, axis=0):
    return tgt.clone().index_add_(axis, idx, src)
def _segment_sum(src, seg, n):
    out = torch.zeros((n,) + src.shape[1:], dtype=src.dtype)
    return out.index_add_(0, seg, src)
def _pad(x, pw):
    flat = tuple(v for pair in reversed(pw) for v in pair)
    return torch.nn.functional.pad(x, flat)

kernel_name = 'interleave_layers__sliding_block_cached__glu_gated_bilinear__decode'

def setup_inputs():

    _w = (lambda a: (lambda t: t.to(torch.bfloat16) if t.is_floating_point() else t)(torch.as_tensor(a)))
    def _A_setup():
        B, Sq, D = 1, 1, 640
        Hq, Hkv, Sk, Dh = 32, 32, 8192, 192
        assert Hq % Hkv == 0, (Hq, Hkv)
        return {
            "x": _w((lambda *s: torch.randn(*s, dtype=torch.bfloat16) * 0.05)(B, Sq, D)),
            "k_cache": _w((lambda *s: torch.randn(*s, dtype=torch.bfloat16) * 0.8)(B, Hkv, Sk, Dh)),
            "v_cache": _w((lambda *s: torch.randn(*s, dtype=torch.bfloat16) * 0.8)(B, Hkv, Sk, Dh)),
            "wq": _w((lambda *s: torch.randn(*s, dtype=torch.bfloat16) * 0.8)(D, Hq * Dh) * (D ** -0.5)),
            "wo": _w((lambda *s: torch.randn(*s, dtype=torch.bfloat16) * 0.8)(Hq * Dh, D) * ((Hq * Dh) ** -0.5)),
        }
    _A_in = _A_setup()

    def _B_setup():
        B, S, D, F = 1, 1, 640, 1536
        return {
            "x": _w((lambda *s: torch.randn(*s, dtype=torch.bfloat16) * 0.05)(B, S, D)),
            "w_gate": _w((lambda *s: torch.randn(*s, dtype=torch.bfloat16) * 0.4)(D, F) * (D ** -0.5)),
            "w_up": _w((lambda *s: torch.randn(*s, dtype=torch.bfloat16) * 0.4)(D, F) * (D ** -0.5)),
            "w_down": _w((lambda *s: torch.randn(*s, dtype=torch.bfloat16) * 0.4)(F, D) * (F ** -0.5)),
        }
    _B_in = _B_setup()

    return {
        "A_x": _A_in["x"],
        "A_k_cache": _A_in["k_cache"],
        "A_v_cache": _A_in["v_cache"],
        "A_wq": _A_in["wq"],
        "A_wo": _A_in["wo"],
        "B_x": _B_in["x"],
        "B_w_gate": _B_in["w_gate"],
        "B_w_up": _B_in["w_up"],
        "B_w_down": _B_in["w_down"],
    }

def reference(A_x, A_k_cache, A_v_cache, A_wq, A_wo, B_x, B_w_gate, B_w_up, B_w_down):
    def _A_ref(x, k_cache, v_cache, wq, wo):
        B, Sq, D = x.shape
        Hq, Dh = 32, 192
        Hkv, Sk = k_cache.shape[1], k_cache.shape[2]
        W = min(4096, max(256, Sk // 4))
        rep = Hq // Hkv
        q = (lambda x, *d: x.permute(*d))((x @ wq).reshape(B, Sq, Hq, Dh), 0, 2, 1, 3)
        k = (lambda x, n, axis: torch.repeat_interleave(x, n, dim=axis))(k_cache[:, :, Sk - W:, :], rep, axis=1)
        v = (lambda x, n, axis: torch.repeat_interleave(x, n, dim=axis))(v_cache[:, :, Sk - W:, :], rep, axis=1)
        scores = torch.einsum("bhqd,bhkd->bhqk", q, k) * (Dh ** -0.5)
        p = _softmax(scores, axis=-1)
        o = torch.einsum("bhqk,bhkd->bhqd", p, v)
        return (lambda x, *d: x.permute(*d))(o, 0, 2, 1, 3).reshape(B, Sq, Hq * Dh) @ wo

    def _B_ref(x, w_gate, w_up, w_down):
        g = torch.einsum("bsd,df->bsf", x, w_gate)
        u = torch.einsum("bsd,df->bsf", x, w_up)
        h = g * u
        return torch.einsum("bsf,fd->bsd", h, w_down)

    x = A_x
    x = x + _A_ref(_layernorm(x, axis=-1), A_k_cache, A_v_cache, A_wq, A_wo)
    x = x + _B_ref(_layernorm(x, axis=-1), B_w_gate, B_w_up, B_w_down)
    x = x + _A_ref(_layernorm(x, axis=-1), A_k_cache, A_v_cache, A_wq, A_wo)
    x = x + _B_ref(_layernorm(x, axis=-1), B_w_gate, B_w_up, B_w_down)
    return x
```

```python
import re

TRANS = ("v_exp_f32", "v_log_f32", "v_rcp_f32", "v_rsq_f32", "v_sqrt_f32", "v_sin_f32", "v_cos_f32")


def split_ops(s):
    out, depth, cur = [], 0, ""
    for ch in s:
        if ch == "[":
            depth += 1
        if ch == "]":
            depth -= 1
        if ch == "," and depth == 0:
            out.append(cur.strip())
            cur = ""
        else:
            cur += ch
    if cur.strip():
        out.append(cur.strip())
    return out


_REG = re.compile(r"^(-?)(?:abs\()?([vsa])(?:(\d+)|\[(\d+):(\d+)\])\)?$")


def regs(tok):
    tok = tok.strip()
    if tok == "vcc":
        return {("s", "vcc")}
    if tok == "exec":
        return {("s", "exec")}
    m = _REG.match(tok)
    if not m:
        return set()
    k = m.group(2)
    if m.group(3) is not None:
        return {(k, int(m.group(3)))}
    return {(k, n) for n in range(int(m.group(4)), int(m.group(5)) + 1)}


class Ins:
    __slots__ = ("text", "mn", "kind", "w", "r", "dpp", "trans", "dot", "perm", "A", "B", "C", "stdata", "slots", "lanesel")

    def __init__(self, text):
        self.text = text
        body = text.split(";")[0].strip()
        parts = body.split(None, 1)
        self.mn = mn = parts[0]
        rest = parts[1] if len(parts) > 1 else ""
        ops = split_ops(rest)
        mods = ""
        if ops:
            last = ops[-1].split()
            ops[-1] = last[0]
            mods = " ".join(last[1:])
        self.w, self.r = set(), set()
        self.A = self.B = self.C = set()
        self.stdata = set()
        self.lanesel = set()
        self.dpp = ("row_" in mods) or ("quad_perm" in mods)
        self.trans = any(mn.startswith(t) for t in TRANS)
        self.dot = mn.startswith("v_dot")
        self.perm = mn.startswith("v_permlane")
        self.slots = 1
        R = [regs(o) for o in ops]
        if mn == "s_nop":
            self.kind = "nop"
            self.slots = int(ops[0], 0) + 1
        elif mn.startswith("v_mfma"):
            self.kind = "mfma"
            self.w = R[0]
            self.A, self.B, self.C = R[1], R[2], R[3]
            self.r = R[1] | R[2] | R[3]
        elif mn.startswith("v_"):
            self.kind = "valu"
            if self.perm:
                self.w = R[0] | R[1]
                self.r = R[0] | R[1]
            elif mn.startswith("v_cmp"):
                self.w = R[0]
                self.r = set().union(*R[1:])
            elif mn.startswith(("v_add_co", "v_addc_co", "v_sub_co", "v_subb_co")):
                self.w = R[0] | R[1]
                self.r = set().union(*R[2:])
            else:
                self.w = R[0]
                self.r = set().union(*R[1:]) if len(R) > 1 else set()
                if mn.startswith(("v_fmac", "v_dot2c", "v_writelane")) or self.dpp:
                    self.r |= R[0]
                if mn.startswith(("v_readlane", "v_writelane")) and len(R) > 2:
                    self.lanesel = R[2]
                if mn.startswith("v_cndmask") and len(R) == 3:
                    self.r |= {("s", "vcc")}
        elif mn.startswith(("buffer_", "global_")):
            self.kind = "vmem"
            if "load" in mn:
                self.w = R[0]
                self.r = set().union(*R[1:])
            elif "atomic" in mn:
                self.r = set().union(*R)
                if "sc0" in mods:
                    self.w = R[0]
            else:
                self.r = set().union(*R)
                data = R[0] if mn.startswith("buffer_") else R[1]
                if "x3" in mn or "x4" in mn:
                    self.stdata = data
        elif mn.startswith("ds_"):
            self.kind = "ds"
            if mn.startswith(("ds_read", "ds_bpermute", "ds_swizzle", "ds_permute")) or "_rtn" in mn:
                self.w = R[0]
                self.r = set().union(*R[1:])
            else:
                self.r = set().union(*R)
        elif mn.startswith("s_"):
            self.kind = "salu"
            nodst = ("s_cmp", "s_bitcmp", "s_branch", "s_cbranch", "s_waitcnt", "s_barrier", "s_endpgm", "s_setprio", "s_sleep", "s_setpc")
            if mn.startswith(nodst):
                self.r = set().union(*R) if R else set()
            else:
                self.w = R[0] if R else set()
                self.r = set().union(*R[1:]) if len(R) > 1 else set()
                if mn.startswith(("s_and_saveexec", "s_or_saveexec")):
                    self.w |= {("s", "exec")}
        else:
            raise ValueError("unknown instruction: " + text)


def vonly(s):
    return {x for x in s if x[0] in ("v", "a")}


def sonly(s):
    return {x for x in s if x[0] == "s"}


def need(p, x):
    n = 0
    pw_v, pw_s = vonly(p.w), sonly(p.w)
    xr_v, xr_s = vonly(x.r), sonly(x.r)
    xw_v = vonly(x.w)
    if p.kind == "valu":
        if pw_v & xr_v:
            if x.kind == "valu" and x.dpp:
                n = max(n, 2)
            if x.perm:
                n = max(n, 2)
            if x.kind == "mfma":
                n = max(n, 2)
            if x.mn.startswith(("v_readlane", "v_readfirstlane")):
                n = max(n, 1)
            if p.trans and x.kind == "valu" and not x.trans:
                n = max(n, 1)
            if p.trans and x.kind in ("vmem", "ds"):
                n = max(n, 1)
        if p.dot and (pw_v & (xr_v | xw_v)):
            same_c = x.dot and x.mn == p.mn and not (pw_v & (xr_v - xw_v)) and x.mn.startswith("v_dot2c")
            if not same_c:
                n = max(n, 3)
        if pw_s & xr_s:
            if x.kind == "valu":
                n = max(n, 2)
            if x.kind == "vmem":
                n = max(n, 5)
            if x.kind == "salu":
                n = max(n, 1)
        if pw_s & x.lanesel:
            n = max(n, 4)
    if p.kind == "mfma":
        if x.kind == "mfma":
            if pw_v & (vonly(x.A) | vonly(x.B)):
                n = max(n, 8)
            if pw_v & vonly(x.C):
                if vonly(x.C) != pw_v:
                    n = max(n, 6)
            elif pw_v & xw_v:
                n = max(n, 8)
        else:
            if pw_v & (xr_v | xw_v):
                n = max(n, 8)
        if x.kind == "valu" and (vonly(p.C) & xw_v):
            n = max(n, 3)
    if p.stdata:
        if (p.stdata & xw_v):
            n = max(n, 2)
    return n


class Asm:
    WINDOW = 12

    def __init__(self):
        self.lines = []
        self.hists = [[]]
        self.pending = {}
        self.label_pos = {}
        self.ninstr = 0

    def raw(self, text=""):
        self.lines.append(text)

    def c(self, text):
        self.lines.append("    ; " + text)

    def _dist_need(self, x):
        req = 0
        for h in self.hists:
            d = 0
            for p in reversed(h):
                n = need(p, x)
                if n > d:
                    req = max(req, n - d)
                d += p.slots
                if d >= self.WINDOW:
                    break
        return req

    def _push(self, ins):
        for h in self.hists:
            h.append(ins)
            if len(h) > 24:
                del h[0]
        if len(self.hists) > 1:
            uniq = []
            for h in self.hists:
                key = [id(q) for q in h[-self.WINDOW:]]
                if not any(key == [id(q) for q in u[-self.WINDOW:]] for u in uniq):
                    uniq.append(h)
            self.hists = uniq

    def i(self, text):
        x = Ins(text)
        k = self._dist_need(x)
        if k > 0:
            nop = Ins("s_nop %d" % (k - 1))
            self.lines.append("    s_nop %d" % (k - 1))
            self._push(nop)
            self.ninstr += 1
        self.lines.append("    " + text)
        self.ninstr += 1
        self._push(x)
        if x.mn.startswith(("s_branch", "s_cbranch")):
            tgt = text.split()[1]
            if tgt in self.label_pos:
                self._check_back(tgt)
            else:
                self.pending.setdefault(tgt, []).extend([list(h) for h in self.hists])
            if x.mn == "s_branch":
                self.hists = [[]]
        if x.mn == "s_endpgm":
            self.hists = [[]]

    def _check_back(self, tgt):
        pos = self.label_pos[tgt]
        hs = [list(h) for h in self.hists]
        cnt = 0
        for ln in self.lines[pos:]:
            t = ln.strip()
            if not t or t.startswith(";") or t.endswith(":") or t.startswith("."):
                continue
            x = Ins(t)
            for h in hs:
                d = 0
                for p in reversed(h):
                    n = need(p, x)
                    if n > d:
                        raise RuntimeError("hazard across back edge to %s: %s -> %s" % (tgt, p.text, x.text))
                    d += p.slots
                    if d >= self.WINDOW:
                        break
                h.append(x)
            cnt += x.slots
            if cnt >= self.WINDOW:
                break

    def label(self, name):
        self.lines.append(name + ":")
        self.label_pos[name] = len(self.lines)
        for h in self.pending.pop(name, []):
            self.hists.append(h)

    def text(self):
        assert not self.pending, "unresolved labels: %s" % list(self.pending)
        return "\n".join(self.lines) + "\n"
```

```python
import sys, os, math, struct
sys.path.insert(0, os.path.dirname(os.path.abspath(__file__)))
from asmlib import Asm

NAME = "interleave_layers__sliding_block_cached__glu_gated_bilinear__decode"

QP, QP_P = 0, 122880
QS = QP + 2 * QP_P
QST = QS + 122880
OP, OP_P = QST + 2048, 262144
XW, XW_P = OP + 2 * OP_P, 81920
XR1 = XW + 2 * XW_P
GP, GP_P = XR1 + 5120, 61440
GS = GP + 2 * GP_P
GST = GS + 61440
XD, XD_P = GST + 6144, 61440
XR2 = XD + 2 * XD_P
XCC = XR2 + 5120
MB_END = XCC + 1024
NCLEAR_WG = 32
CLEAR_KB = 44
assert NCLEAR_WG * CLEAR_KB * 1024 >= MB_END
STAMPS = NCLEAR_WG * CLEAR_KB * 1024
WS_BYTES = STAMPS + 256 * 256

ACC_P = 6400
ACC_Q, ACC_O, ACC_WO, ACC_GU, ACC_DN = 0, 1280, 2560, 3840, 5120
QBUF = 12800
MBUF = 13568
FLAG = 13600
LDS_BYTES = 16384

SENT = 0xFFFFFFFF
OOB = 0x40000000
POLL_BOUND = 1 << 17


def f32bits(x):
    return struct.unpack("<I", struct.pack("<f", x))[0]


SCALE_LOG2 = math.log2(math.e) / math.sqrt(192.0)


class Opt:
    stamps = False
    fast = True
    nt = True
    kthrottle = 0
    prefetch_code = False


def vr(a, n=1):
    return "v%d" % a if n == 1 else "v[%d:%d]" % (a, a + n - 1)


def sr(a, n=1):
    return "s%d" % a if n == 1 else "s[%d:%d]" % (a, a + n - 1)


S_WG = 2
S_PX, S_PK, S_PV, S_PWQ, S_PWO, S_PG, S_PU, S_PD, S_POUT, S_PDBG, S_PWS = 4, 6, 8, 10, 12, 16, 18, 20, 22, 24, 26
S_G, S_R, S_WAVE, S_P = 28, 29, 30, 31
S_T0, S_T1, S_POLL, S_T2 = 32, 33, 34, 35
SRD_WS = 36
S_RHOQ, S_CB, S_HW, S_JW, S_HB, S_JG, S_WW, S_FAST = 72, 73, 74, 75, 76, 77, 78, 79
S_T3, S_T4, S_T5, S_T6 = 80, 81, 82, 83


def gen(opt):
    a = Asm()
    I = a.i
    uid = [0]

    def L(prefix):
        uid[0] += 1
        return "L_%s_%d" % (prefix, uid[0])

    nt = " nt" if opt.nt else ""

    def srd(dst, ptr, off_sreg, nrec_imm=None, total=None):
        if off_sreg is None:
            I("s_mov_b32 %s, %s" % (sr(dst), sr(ptr)))
            I("s_and_b32 %s, %s, 0xffff" % (sr(dst + 1), sr(ptr + 1)))
        else:
            I("s_add_u32 %s, %s, %s" % (sr(dst), sr(ptr), sr(off_sreg)))
            I("s_addc_u32 %s, %s, 0" % (sr(dst + 1), sr(ptr + 1)))
            I("s_and_b32 %s, %s, 0xffff" % (sr(dst + 1), sr(dst + 1)))
        if nrec_imm is not None:
            I("s_mov_b32 %s, 0x%x" % (sr(dst + 2), nrec_imm))
        else:
            I("s_sub_u32 %s, 0x%x, %s" % (sr(dst + 2), total, sr(off_sreg)))
        I("s_mov_b32 %s, 0x20000" % sr(dst + 3))

    def exec_full():
        I("s_mov_b64 exec, -1")

    def exec_set(lo, hi):
        I("s_mov_b32 exec_lo, 0x%x" % lo)
        I("s_mov_b32 exec_hi, 0x%x" % hi)

    def make_masks(vmask, vl, t0, t1, t2):
        I("v_and_b32 %s, 1, %s" % (vr(t0), vr(vl)))
        I("v_lshlrev_b32 %s, 4, %s" % (vr(t0), vr(t0)))
        I("v_mov_b32 %s, 0xffff" % vr(t1))
        I("v_lshlrev_b32 %s, %s, %s" % (vr(t1), vr(t0), vr(t1)))
        I("v_bfe_u32 %s, %s, 1, 2" % (vr(t2), vr(vl)))
        for w in range(4):
            I("v_cmp_eq_u32 vcc, %d, %s" % (w, vr(t2)))
            I("v_cndmask_b32 %s, 0, %s, vcc" % (vr(vmask + w), vr(t1)))

    def treduce(r):
        I("v_permlane32_swap_b32 %s, %s" % (vr(r), vr(r + 2)))
        I("v_permlane32_swap_b32 %s, %s" % (vr(r + 1), vr(r + 3)))
        I("v_add_f32 %s, %s, %s" % (vr(r), vr(r), vr(r + 2)))
        I("v_add_f32 %s, %s, %s" % (vr(r + 1), vr(r + 1), vr(r + 3)))
        I("v_permlane16_swap_b32 %s, %s" % (vr(r), vr(r + 1)))
        I("v_add_f32 %s, %s, %s" % (vr(r), vr(r), vr(r + 1)))
        I("v_add_f32_dpp %s, %s, %s row_ror:8 row_mask:0xf bank_mask:0xf" % (vr(r), vr(r), vr(r)))

    def allred345(op, r, t):
        I("%s_dpp %s, %s, %s row_ror:8 row_mask:0xf bank_mask:0xf" % (op, vr(r), vr(r), vr(r)))
        I("v_mov_b32 %s, %s" % (vr(t), vr(r)))
        I("v_permlane16_swap_b32 %s, %s" % (vr(r), vr(t)))
        I("%s %s, %s, %s" % (op, vr(r), vr(r), vr(t)))
        I("v_mov_b32 %s, %s" % (vr(t), vr(r)))
        I("v_permlane32_swap_b32 %s, %s" % (vr(r), vr(t)))
        I("%s %s, %s, %s" % (op, vr(r), vr(r), vr(t)))

    def gemv16(vD, tile, srcs, vmask, setA, setB):
        sets = [setA, setB]

        def build(k):
            cr, ln = srcs[k]
            for w in range(4):
                I("v_and_b32_dpp %s, %s, %s row_newbcast:%d row_mask:0xf bank_mask:0xf" % (vr(sets[k & 1] + w), vr(cr), vr(vmask + w), ln))
        build(0)
        for k in range(len(srcs)):
            if k + 1 < len(srcs):
                build(k + 1)
            c = "0" if k == 0 else vr(vD, 4)
            I("v_mfma_f32_16x16x32_bf16 %s, %s, %s, %s" % (vr(vD, 4), vr(sets[k & 1], 4), vr(tile + 4 * k, 4), c))

    def gemv_ones(vD, tile, nb, vones):
        for k in range(nb):
            c = "0" if k == 0 else vr(vD, 4)
            I("v_mfma_f32_16x16x32_bf16 %s, %s, %s, %s" % (vr(vD, 4), vr(vones, 4), vr(tile + 4 * k, 4), c))

    def poll_begin(name):
        lab = L(name)
        I("s_mov_b32 %s, 0x%x" % (sr(S_POLL), POLL_BOUND))
        a.label(lab)
        return lab

    def poll_end(lab, va, vb):
        done = L("pd")
        I("v_cmp_u_f32 vcc, %s, %s" % (vr(va), vr(vb)))
        I("s_cbranch_vccz %s" % done)
        I("s_sub_u32 %s, %s, 1" % (sr(S_POLL), sr(S_POLL)))
        I("s_cbranch_scc0 %s" % lab)
        a.label(done)

    def store_local(text):
        if not opt.fast:
            I(text + " sc1")
            return
        lf, ld = L("stf"), L("std")
        I("s_cmp_eq_u32 %s, 1" % sr(S_FAST))
        I("s_cbranch_scc1 %s" % lf)
        I(text + " sc1")
        I("s_branch %s" % ld)
        a.label(lf)
        I(text)
        a.label(ld)

    nstamp = [0]
    STAMP0 = 48

    def stamp(name):
        if not opt.stamps:
            return
        k = nstamp[0]
        nstamp[0] += 1
        assert STAMP0 + 2 * k + 1 <= 71 or True
        reg = stamp_regs[k]
        I("s_memrealtime %s" % sr(reg, 2))
        stamp_names.append(name)

    stamp_regs = list(range(48, 72, 2)) + list(range(84, 102, 2))
    stamp_names = []

    kern = NAME + "_kernel"
    a.raw(".amdgcn_target \"amdgcn-amd-amdhsa--gfx950\"")
    a.raw(".text")
    a.raw(".globl %s" % kern)
    a.raw(".p2align 8")
    a.raw(".type %s,@function" % kern)
    a.raw(kern + ":")
    I("s_cmp_ge_u32 s2, 256")
    I("s_cbranch_scc1 L_END")
    I("s_load_dwordx16 s[4:19], s[0:1], 0")
    I("s_load_dwordx8 s[20:27], s[0:1], 64")
    I("v_and_b32 v1, 63, v0")
    I("v_lshrrev_b32 v2, 6, v0")
    I("s_and_b32 %s, s2, 7" % sr(S_G))
    I("s_lshr_b32 %s, s2, 3" % sr(S_R))
    I("v_readfirstlane_b32 %s, v2" % sr(S_WAVE))
    I("s_mov_b32 %s, 0" % sr(S_P))
    I("s_mov_b32 %s, 0" % sr(S_FAST))
    I("s_mul_i32 %s, %s, 43" % (sr(S_RHOQ), sr(S_R)))
    I("s_lshr_b32 %s, %s, 8" % (sr(S_RHOQ), sr(S_RHOQ)))
    I("s_mul_i32 %s, %s, 6" % (sr(S_T0), sr(S_RHOQ)))
    I("s_sub_u32 %s, %s, %s" % (sr(S_CB), sr(S_R), sr(S_T0)))
    I("s_max_u32 %s, %s, 12" % (sr(S_T0), sr(S_R)))
    I("s_sub_u32 %s, %s, 12" % (sr(S_T0), sr(S_T0)))
    I("s_mul_i32 %s, %s, 52" % (sr(S_HW), sr(S_T0)))
    I("s_lshr_b32 %s, %s, 8" % (sr(S_HW), sr(S_HW)))
    I("s_mul_i32 %s, %s, 5" % (sr(S_T1), sr(S_HW)))
    I("s_sub_u32 %s, %s, %s" % (sr(S_JW), sr(S_T0), sr(S_T1)))
    I("s_min_u32 %s, %s, 14" % (sr(S_T0), sr(S_R)))
    I("s_mul_i32 %s, %s, 52" % (sr(S_HB), sr(S_T0)))
    I("s_lshr_b32 %s, %s, 8" % (sr(S_HB), sr(S_HB)))
    I("s_mul_i32 %s, %s, 5" % (sr(S_T1), sr(S_HB)))
    I("s_sub_u32 %s, %s, %s" % (sr(S_JG), sr(S_T0), sr(S_T1)))
    I("s_and_b32 %s, %s, 3" % (sr(S_WW), sr(S_WAVE)))
    I("s_waitcnt lgkmcnt(0)")
    srd(SRD_WS, S_PWS, None, nrec_imm=WS_BYTES if opt.stamps else STAMPS)
    I("s_cmp_ge_u32 %s, 4" % sr(S_WAVE))
    I("s_cbranch_scc1 L_W")

    SRD_K, SRD_V = 40, 44
    K0, V0 = 64, 160
    vL, vKV, vACC, vPUB, vL16, vQA, vOA = 1, 2, 3, 4, 5, 6, 7
    vMASK, vQ, vS, vA0, vA1, vD, vT = 8, 12, 24, 32, 36, 40, 52
    a.c("================= KV waves =================")
    stamp("kv_start")
    I("s_lshr_b32 %s, %s, 3" % (sr(S_T0), sr(S_R)))
    I("s_lshl_b32 %s, %s, 2" % (sr(S_T1), sr(S_G)))
    I("s_add_u32 %s, %s, %s" % (sr(S_T0), sr(S_T0), sr(S_T1)))
    I("s_mul_i32 %s, %s, 3145728" % (sr(S_T0), sr(S_T0)))
    I("s_and_b32 %s, %s, 7" % (sr(S_T1), sr(S_R)))
    I("s_mul_i32 %s, %s, 98304" % (sr(S_T1), sr(S_T1)))
    I("s_add_u32 %s, %s, %s" % (sr(S_T0), sr(S_T0), sr(S_T1)))
    I("s_mul_i32 %s, %s, 24576" % (sr(S_T1), sr(S_WW)))
    I("s_add_u32 %s, %s, %s" % (sr(S_T0), sr(S_T0), sr(S_T1)))
    I("s_add_u32 %s, %s, 2359296" % (sr(S_T0), sr(S_T0)))
    srd(SRD_K, S_PK, S_T0, nrec_imm=24576)
    srd(SRD_V, S_PV, S_T0, nrec_imm=24576)
    I("v_lshrrev_b32 %s, 3, %s" % (vr(vT), vr(vL)))
    I("v_and_b32 %s, 7, %s" % (vr(vT + 1), vr(vL)))
    I("v_mul_u32_u24 %s, 0x180, %s" % (vr(vKV), vr(vT)))
    I("v_lshl_add_u32 %s, %s, 4, %s" % (vr(vKV), vr(vT + 1), vr(vKV)))

    def kv_loads(srdn, base):
        n = 0
        for G in range(8):
            if G:
                I("s_mov_b32 %s, %d" % (sr(S_T2), G * 3072))
            so = sr(S_T2) if G else "0"
            for t in range(3):
                r = base + 12 * G + 4 * t
                I("buffer_load_dwordx4 %s, %s, %s, %s offen offset:%d%s" % (vr(r, 4), vr(vKV), sr(srdn, 4), so, 128 * t, nt))
                n += 1
            if opt.kthrottle and G < 7:
                I("s_waitcnt vmcnt(%d)" % opt.kthrottle)

    kv_loads(SRD_K, K0)
    make_masks(vMASK, vL, vT + 2, vT + 3, vT + 4)
    I("v_lshlrev_b32 %s, 2, %s" % (vr(vACC), vr(vL)))
    I("v_and_b32 %s, 15, %s" % (vr(vT + 2), vr(vL)))
    I("v_lshlrev_b32 %s, 5, %s" % (vr(vPUB), vr(vT + 2)))
    I("v_bfe_u32 %s, %s, 4, 1" % (vr(vT + 3), vr(vL)))
    I("v_lshl_add_u32 %s, %s, 4, %s" % (vr(vPUB), vr(vT + 3), vr(vPUB)))
    I("v_lshlrev_b32 %s, 4, %s" % (vr(vL16), vr(vL)))
    I("v_lshlrev_b32 %s, 4, %s" % (vr(vQA), vr(vT + 1)))
    I("v_lshlrev_b32 %s, 5, %s" % (vr(vOA), vr(vT + 1)))
    I("v_lshl_add_u32 %s, %s, 4, %s" % (vr(vOA), vr(vT + 3), vr(vOA)))
    I("v_bfe_u32 %s, %s, 3, 1" % (vr(vT + 2), vr(vL)))
    I("v_lshl_add_u32 %s, %s, 3, %s" % (vr(vOA), vr(vT + 2), vr(vOA)))
    I("v_lshrrev_b32 %s, 5, %s" % (vr(vT + 2), vr(vL)))
    I("v_lshl_add_u32 %s, %s, 2, %s" % (vr(vOA), vr(vT + 2), vr(vOA)))
    S_C = 70
    stamp_regs[:] = [x for x in stamp_regs if x != 70]
    I("s_mov_b32 %s, 0x%x" % (sr(S_C), f32bits(SCALE_LOG2)))
    S_OQP, S_OQST, S_OOP, S_OXW, S_OGP, S_OGST, S_OXD = 84, 85, 86, 87, 88, 89, 90
    for x in range(84, 92, 2):
        if x in stamp_regs:
            stamp_regs.remove(x)
    I("s_mul_i32 %s, %s, 5" % (sr(S_T0), sr(S_G)))
    I("s_add_u32 %s, %s, %s" % (sr(S_T0), sr(S_T0), sr(S_RHOQ)))
    I("s_mul_i32 %s, %s, 3072" % (sr(S_T0), sr(S_T0)))
    I("s_lshl_b32 %s, %s, 9" % (sr(S_T1), sr(S_CB)))
    I("s_add_u32 %s, %s, %s" % (sr(S_OQP), sr(S_T0), sr(S_T1)))
    if QP:
        I("s_add_u32 %s, %s, %d" % (sr(S_OQP), sr(S_OQP), QP))
    I("s_lshl_b32 %s, %s, 7" % (sr(S_T0), sr(S_G)))
    I("s_lshl_b32 %s, %s, 3" % (sr(S_T1), sr(S_RHOQ)))
    I("s_add_u32 %s, %s, %s" % (sr(S_OQST), sr(S_T0), sr(S_T1)))
    I("s_add_u32 %s, %s, %d" % (sr(S_OQST), sr(S_OQST), QST))
    I("s_lshl_b32 %s, %s, 5" % (sr(S_T0), sr(S_G)))
    I("s_add_u32 %s, %s, %s" % (sr(S_T0), sr(S_T0), sr(S_R)))
    I("s_lshl_b32 %s, %s, 10" % (sr(S_T0), sr(S_T0)))
    I("s_add_u32 %s, %s, %d" % (sr(S_OOP), sr(S_T0), OP))
    I("s_lshl_b32 %s, %s, 2" % (sr(S_T0), sr(S_G)))
    I("s_add_u32 %s, %s, %s" % (sr(S_T0), sr(S_T0), sr(S_HW)))
    I("s_mul_i32 %s, %s, 2560" % (sr(S_T0), sr(S_T0)))
    I("s_lshl_b32 %s, %s, 9" % (sr(S_T1), sr(S_JW)))
    I("s_add_u32 %s, %s, %s" % (sr(S_T0), sr(S_T0), sr(S_T1)))
    I("s_add_u32 %s, %s, %d" % (sr(S_OXW), sr(S_T0), XW))
    I("s_mul_i32 %s, %s, 3" % (sr(S_T0), sr(S_G)))
    I("s_add_u32 %s, %s, %s" % (sr(S_T0), sr(S_T0), sr(S_HB)))
    I("s_mul_i32 %s, %s, 2560" % (sr(S_T1), sr(S_T0)))
    I("s_lshl_b32 %s, %s, 9" % (sr(S_T2), sr(S_JG)))
    I("s_add_u32 %s, %s, %s" % (sr(S_T1), sr(S_T1), sr(S_T2)))
    I("s_add_u32 %s, %s, %d" % (sr(S_OXD), sr(S_T1), XD))
    I("s_lshl_b32 %s, %s, 7" % (sr(S_T1), sr(S_T0)))
    I("s_lshl_b32 %s, %s, 3" % (sr(S_T2), sr(S_JG)))
    I("s_add_u32 %s, %s, %s" % (sr(S_T1), sr(S_T1), sr(S_T2)))
    I("s_add_u32 %s, %s, %d" % (sr(S_OGST), sr(S_T1), GST))
    I("s_mul_i32 %s, %s, 5" % (sr(S_T0), sr(S_T0)))
    I("s_add_u32 %s, %s, %s" % (sr(S_T0), sr(S_T0), sr(S_JG)))
    I("s_lshl_b32 %s, %s, 9" % (sr(S_T0), sr(S_T0)))
    I("s_add_u32 %s, %s, %d" % (sr(S_OGP), sr(S_T0), GP))
    stamp("k_issued")
    I("s_barrier")

    def publish128(acc, soff, stats_soff, local, s_delta, cond_stats=None):
        t = vT
        I("ds_read2st64_b32 %s, %s offset0:%d offset1:%d" % (vr(t, 2), vr(vACC), acc // 256, acc // 256 + 1))
        I("ds_read2st64_b32 %s, %s offset0:%d offset1:%d" % (vr(t + 2, 2), vr(vACC), acc // 256 + 2, acc // 256 + 3))
        if stats_soff is not None:
            I("v_mov_b32 %s, %s" % (vr(t + 7), sr(S_T3)))
            I("ds_read_b64 %s, %s offset:%d" % (vr(t + 4, 2), vr(t + 7), acc + 1024))
        I("v_mov_b32 %s, %s" % (vr(t + 6), vr(vPUB)))
        if s_delta is not None:
            lab = L("pub1")
            lab2 = L("pub2")
            I("s_cmp_eq_u32 %s, 0" % sr(S_P))
            I("s_cbranch_scc0 %s" % lab)
            exec_set(0, 0xFFFFFFFF)
            I("v_add_u32 %s, %d, %s" % (vr(t + 6), s_delta, vr(t + 6)))
            exec_full()
            I("s_branch %s" % lab2)
            a.label(lab)
            exec_set(0xFFFFFFFF, 0)
            a.label(lab2)
        else:
            exec_set(0xFFFFFFFF, 0)
        I("s_waitcnt lgkmcnt(0)")
        st = "buffer_store_dwordx4 %s, %s, %s, %s offen" % (vr(t, 4), vr(t + 6), sr(SRD_WS, 4), sr(soff))
        if local:
            store_local(st)
        else:
            I(st + " sc1")
        if stats_soff is not None:
            skip = L("nost")
            if cond_stats is not None:
                I("s_cmp_eq_u32 %s, 0" % sr(cond_stats))
                I("s_cbranch_scc0 %s" % skip)
            exec_set(1, 0)
            st = "buffer_store_dwordx2 %s, off, %s, %s" % (vr(t + 4, 2), sr(SRD_WS, 4), sr(stats_soff))
            if local:
                store_local(st)
            else:
                I(st + " sc1")
            a.label(skip)
        exec_full()

    a.label("L_KV_LOOP")
    I("s_mul_i32 %s, %s, %d" % (sr(S_T3), sr(S_P), ACC_P))
    I("s_barrier")
    stamp_q = None
    sk = L("kvq")
    I("s_cmp_lg_u32 %s, 0" % sr(S_WAVE))
    I("s_cbranch_scc1 %s" % sk)
    I("s_cmp_ge_u32 %s, 30" % sr(S_R))
    I("s_cbranch_scc1 %s" % sk)
    publish128(ACC_Q, S_OQP, S_OQST, True, QS - QP, cond_stats=S_CB)
    a.label(sk)
    sk = L("kvv")
    I("s_cmp_lg_u32 %s, 0" % sr(S_P))
    I("s_cbranch_scc1 %s" % sk)
    kv_loads(SRD_V, V0)
    a.label(sk)
    I("s_barrier")
    sk = L("kvf")
    I("s_cmp_lg_u32 %s, 0" % sr(S_P))
    I("s_cbranch_scc1 %s" % sk)
    I("v_mov_b32 %s, %d" % (vr(vT), FLAG))
    I("ds_read_b32 %s, %s" % (vr(vT + 1), vr(vT)))
    I("s_waitcnt lgkmcnt(0)")
    I("v_readfirstlane_b32 %s, %s" % (sr(S_FAST), vr(vT + 1)))
    a.label(sk)
    for t in range(3):
        I("ds_read_b128 %s, %s offset:%d" % (vr(vQ + 4 * t, 4), vr(vQA), QBUF + 128 * t))
    I("s_waitcnt vmcnt(24) lgkmcnt(0)")
    for t in range(3):
        for w in range(4):
            for G in range(8):
                k = K0 + 12 * G + 4 * t + w
                if t == 0 and w == 0:
                    I("v_dot2_f32_bf16 %s, %s, %s, 0" % (vr(vS + G), vr(k), vr(vQ)))
                else:
                    I("v_dot2c_f32_bf16 %s, %s, %s" % (vr(vS + G), vr(k), vr(vQ + 4 * t + w)))
    for mod in ("quad_perm:[1,0,3,2]", "quad_perm:[2,3,0,1]", "row_half_mirror"):
        for G in range(8):
            I("v_add_f32_dpp %s, %s, %s %s row_mask:0xf bank_mask:0xf" % (vr(vS + G), vr(vS + G), vr(vS + G), mod))
    vM, vM2, vLs, vF = vA0, vA0 + 1, vA0 + 2, vA0 + 3
    I("v_max3_f32 %s, %s, %s, %s" % (vr(vM), vr(vS), vr(vS + 1), vr(vS + 2)))
    I("v_max3_f32 %s, %s, %s, %s" % (vr(vM2), vr(vS + 3), vr(vS + 4), vr(vS + 5)))
    I("v_max3_f32 %s, %s, %s, %s" % (vr(vM), vr(vM), vr(vS + 6), vr(vS + 7)))
    I("v_max_f32 %s, %s, %s" % (vr(vM), vr(vM), vr(vM2)))
    allred345("v_max_f32", vM, vM2)
    vMC = vQ
    vLS, vTT, vM4 = vQ + 1, vQ + 2, vQ + 4
    I("v_mul_f32 %s, %s, %s" % (vr(vMC), sr(S_C), vr(vM)))
    I("s_lshl_b32 %s, %s, 2" % (sr(S_T0), sr(S_WW)))
    I("s_lshl_b32 %s, %s, 4" % (sr(S_T1), sr(S_P)))
    I("s_add_u32 %s, %s, %s" % (sr(S_T0), sr(S_T0), sr(S_T1)))
    I("v_mov_b32 %s, %s" % (vr(vTT), sr(S_T0)))
    exec_set(1, 0)
    I("ds_write_b32 %s, %s offset:%d" % (vr(vTT), vr(vMC), MBUF))
    exec_full()
    for G in range(8):
        I("v_fma_f32 %s, %s, %s, -%s" % (vr(vS + G), vr(vS + G), sr(S_C), vr(vMC)))
    for G in range(8):
        I("v_exp_f32 %s, %s" % (vr(vS + G), vr(vS + G)))
    vP = vT
    for G in range(8):
        I("v_cvt_pk_bf16_f32 %s, %s, %s" % (vr(vP + G), vr(vS + G), vr(vS + G)))

    def buildA(G):
        s = vA0 if (G & 1) == 0 else vA1
        for w in range(4):
            I("v_and_b32 %s, %s, %s" % (vr(s + w), vr(vP + G), vr(vMASK + w)))

    buildA(0)
    lsum = [
        "v_add_f32 %s, %s, %s" % (vr(vS), vr(vS), vr(vS + 1)),
        "v_add_f32 %s, %s, %s" % (vr(vS + 2), vr(vS + 2), vr(vS + 3)),
        "v_add_f32 %s, %s, %s" % (vr(vS + 4), vr(vS + 4), vr(vS + 5)),
        "v_add_f32 %s, %s, %s" % (vr(vS + 6), vr(vS + 6), vr(vS + 7)),
        "v_add_f32 %s, %s, %s" % (vr(vS), vr(vS), vr(vS + 2)),
        "v_add_f32 %s, %s, %s" % (vr(vS + 4), vr(vS + 4), vr(vS + 6)),
        "v_add_f32 %s, %s, %s" % (vr(vLS), vr(vS), vr(vS + 4)),
    ]
    for G in range(8):
        if G + 1 < 8:
            buildA(G + 1)
        I("s_waitcnt vmcnt(%d)" % (21 - 3 * G))
        s = vA0 if (G & 1) == 0 else vA1
        for t in range(3):
            c = "0" if G == 0 else vr(vD + 4 * t, 4)
            I("v_mfma_f32_16x16x32_bf16 %s, %s, %s, %s" % (vr(vD + 4 * t, 4), vr(s, 4), vr(V0 + 12 * G + 4 * t, 4), c))
        if G == 0:
            for x in lsum:
                I(x)
        if G == 1:
            allred345("v_add_f32", vLS, vTT)
        if G == 2:
            I("s_waitcnt lgkmcnt(0)")
            I("s_barrier")
            I("s_lshl_b32 %s, %s, 4" % (sr(S_T1), sr(S_P)))
            I("v_mov_b32 %s, %s" % (vr(vTT), sr(S_T1)))
            I("ds_read_b128 %s, %s offset:%d" % (vr(vM4, 4), vr(vTT), MBUF))
        if G == 4:
            I("s_waitcnt lgkmcnt(0)")
            I("v_max3_f32 %s, %s, %s, %s" % (vr(vM4), vr(vM4), vr(vM4 + 1), vr(vM4 + 2)))
            I("v_max_f32 %s, %s, %s" % (vr(vM4), vr(vM4), vr(vM4 + 3)))
            I("v_sub_f32 %s, %s, %s" % (vr(vM4 + 1), vr(vMC), vr(vM4)))
            I("v_exp_f32 %s, %s" % (vr(vM4 + 1), vr(vM4 + 1)))
            I("v_mul_f32 %s, %s, %s" % (vr(vLS), vr(vLS), vr(vM4 + 1)))
    vFf = vM4 + 1
    for t in range(3):
        d = vD + 4 * t
        I("v_permlane32_swap_b32 %s, %s" % (vr(d), vr(d + 1)))
        I("v_permlane32_swap_b32 %s, %s" % (vr(d + 2), vr(d + 3)))
    for t in range(3):
        d = vD + 4 * t
        I("v_add_f32_dpp %s, %s, %s row_ror:8 row_mask:0xf bank_mask:0xf" % (vr(d), vr(d + 1), vr(d)))
        I("v_add_f32_dpp %s, %s, %s row_ror:8 row_mask:0xf bank_mask:0xf" % (vr(d + 2), vr(d + 3), vr(d + 2)))
    for t in range(3):
        d = vD + 4 * t
        I("v_mov_b32_dpp %s, %s row_ror:8 row_mask:0xf bank_mask:0xc" % (vr(d), vr(d + 2)))
    for t in range(3):
        d = vD + 4 * t
        I("v_mul_f32 %s, %s, %s" % (vr(d), vr(d), vr(vFf)))
    for t in range(3):
        I("ds_add_f32 %s, %s offset:%d" % (vr(vOA), vr(vD + 4 * t), ACC_O + 256 * t))
    I("v_mov_b32 %s, %s" % (vr(vTT), sr(S_T3)))
    exec_set(1, 0)
    I("ds_add_f32 %s, %s offset:%d" % (vr(vTT), vr(vLS), ACC_O + 772))
    sk = L("kvm")
    I("s_cmp_lg_u32 %s, 0" % sr(S_WAVE))
    I("s_cbranch_scc1 %s" % sk)
    I("ds_write_b32 %s, %s offset:%d" % (vr(vTT), vr(vM4), ACC_O + 768))
    a.label(sk)
    exec_full()
    I("s_waitcnt lgkmcnt(0)")
    I("s_barrier")
    sk = L("kvo")
    I("s_cmp_lg_u32 %s, 0" % sr(S_WAVE))
    I("s_cbranch_scc1 %s" % sk)
    exec_set(0xFFFFFFFF, 0x1FFFF)
    I("ds_read_b128 %s, %s offset:%d" % (vr(vT, 4), vr(vL16), ACC_O))
    I("v_lshlrev_b32 %s, 4, %s" % (vr(vT + 6), vr(vL)))
    I("s_waitcnt lgkmcnt(0)")
    store_local("buffer_store_dwordx4 %s, %s, %s, %s offen" % (vr(vT, 4), vr(vT + 6), sr(SRD_WS, 4), sr(S_OOP)))
    exec_full()
    a.label(sk)
    I("s_barrier")
    sk = L("kvw")
    I("s_cmp_lg_u32 %s, 0" % sr(S_WAVE))
    I("s_cbranch_scc1 %s" % sk)
    I("s_cmp_lt_u32 %s, 12" % sr(S_R))
    I("s_cbranch_scc1 %s" % sk)
    publish128(ACC_WO, S_OXW, None, False, None)
    a.label(sk)
    I("s_barrier")
    sk = L("kvg")
    I("s_cmp_lg_u32 %s, 0" % sr(S_WAVE))
    I("s_cbranch_scc1 %s" % sk)
    I("s_cmp_ge_u32 %s, 15" % sr(S_R))
    I("s_cbranch_scc1 %s" % sk)
    publish128(ACC_GU, S_OGP, S_OGST, True, GS - GP)
    a.label(sk)
    I("s_barrier")
    sk = L("kvd")
    I("s_cmp_lg_u32 %s, 0" % sr(S_WAVE))
    I("s_cbranch_scc1 %s" % sk)
    I("s_cmp_ge_u32 %s, 15" % sr(S_R))
    I("s_cbranch_scc1 %s" % sk)
    publish128(ACC_DN, S_OXD, None, False, None)
    a.label(sk)
    I("s_add_u32 %s, %s, 1" % (sr(S_P), sr(S_P)))
    I("s_add_u32 %s, %s, %d" % (sr(S_OQP), sr(S_OQP), QP_P))
    I("s_add_u32 %s, %s, %d" % (sr(S_OQST), sr(S_OQST), 1024))
    I("s_add_u32 %s, %s, %d" % (sr(S_OOP), sr(S_OOP), OP_P))
    I("s_add_u32 %s, %s, %d" % (sr(S_OXW), sr(S_OXW), XW_P))
    I("s_add_u32 %s, %s, %d" % (sr(S_OGP), sr(S_OGP), GP_P))
    I("s_add_u32 %s, %s, %d" % (sr(S_OGST), sr(S_OGST), 3072))
    I("s_add_u32 %s, %s, %d" % (sr(S_OXD), sr(S_OXD), XD_P))
    I("v_add_u32 %s, %d, %s" % (vr(vACC), ACC_P, vr(vACC)))
    I("v_add_u32 %s, %d, %s" % (vr(vL16), ACC_P, vr(vL16)))
    I("v_add_u32 %s, %d, %s" % (vr(vOA), ACC_P, vr(vOA)))
    I("v_add_u32 %s, %d, %s" % (vr(vQA), 384, vr(vQA)))
    I("s_cmp_lt_u32 %s, 2" % sr(S_P))
    I("s_cbranch_scc1 L_KV_LOOP")
    I("s_endpgm")

    a.c("================= W waves =================")
    a.label("L_W")
    SRD_WQ, SRD_WO, SRD_G, SRD_U, SRD_D, SRD_X, SRD_OUT, SRD_DBG = 40, 44, 48, 52, 56, 60, 64, 68
    TQ, TWO, TGU, TDN = 64, 96, 144, 176
    vW16 = 2
    vXG, vRES, vSTA, vACCW = 3, 4, 5, 6
    vOG, vOG2, vOGS, vHG, vQG = 12, 13, 14, 15, 16
    vSQ = 20
    vSH = 24
    vXR = 25
    vXB = 26
    vXB2 = 27
    vONES = 48
    vG = 192
    vDW, vDS = 40, 44
    I("v_and_b32 %s, 7, %s" % (vr(vT), vr(vL)))
    I("v_lshrrev_b32 %s, 3, %s" % (vr(vT + 1), vr(vL)))
    I("v_lshrrev_b32 %s, 4, %s" % (vr(vT + 2), vr(vL)))
    I("v_and_b32 %s, 15, %s" % (vr(vT + 3), vr(vL)))
    sk = L("clr")
    I("s_cmp_ge_u32 s2, %d" % NCLEAR_WG)
    I("s_cbranch_scc1 %s" % sk)
    I("s_cmp_lg_u32 %s, 0" % sr(S_WW))
    I("s_cbranch_scc1 %s" % sk)
    I("v_lshlrev_b32 %s, 4, %s" % (vr(vT + 4), vr(vL)))
    for k in range(4):
        I("v_mov_b32 %s, -1" % vr(vG + k))
    I("s_mul_i32 %s, s2, %d" % (sr(S_T0), CLEAR_KB * 1024))
    for k in range(CLEAR_KB):
        if k and k % 4 == 0:
            I("s_add_u32 %s, %s, 4096" % (sr(S_T0), sr(S_T0)))
        I("buffer_store_dwordx4 %s, %s, %s, %s offen offset:%d sc1" % (vr(vG, 4), vr(vT + 4), sr(SRD_WS, 4), sr(S_T0), (k % 4) * 1024))
    a.label(sk)
    I("s_lshl_b32 %s, %s, 7" % (sr(S_T0), sr(S_RHOQ)))
    I("s_lshl_b32 %s, %s, 5" % (sr(S_T1), sr(S_WW)))
    I("s_add_u32 %s, %s, %s" % (sr(S_T4), sr(S_T0), sr(S_T1)))
    I("s_mul_i32 %s, %s, 12288" % (sr(S_T0), sr(S_T4)))
    I("s_mul_i32 %s, %s, 1536" % (sr(S_T1), sr(S_G)))
    I("s_add_u32 %s, %s, %s" % (sr(S_T0), sr(S_T0), sr(S_T1)))
    I("s_lshl_b32 %s, %s, 8" % (sr(S_T1), sr(S_CB)))
    I("s_add_u32 %s, %s, %s" % (sr(S_T0), sr(S_T0), sr(S_T1)))
    sk = L("noq0")
    I("s_cmp_ge_u32 %s, 30" % sr(S_R))
    I("s_cbranch_scc1 %s" % sk)
    srd(SRD_WQ, S_PWQ, S_T0, total=640 * 6144 * 2)
    srd(SRD_X, S_PX, None, nrec_imm=1280)
    I("v_mul_u32_u24 %s, 12288, %s" % (vr(vW16), vr(vT + 2)))
    I("v_lshl_add_u32 %s, %s, 4, %s" % (vr(vW16), vr(vT + 3), vr(vW16)))
    for k in range(8):
        if k:
            I("s_mov_b32 %s, %d" % (sr(S_T2), k * 4 * 12288))
        I("buffer_load_dwordx4 %s, %s, %s, %s offen%s" % (vr(TQ + 4 * k, 4), vr(vW16), sr(SRD_WQ, 4), sr(S_T2) if k else "0", nt))
    I("v_lshl_add_u32 %s, %s, 2, %s" % (vr(vT + 4), vr(vT), vr(vT + 2)))
    I("v_add_u32 %s, %s, %s" % (vr(vT + 4), sr(S_T4), vr(vT + 4)))
    I("v_lshlrev_b32 %s, 1, %s" % (vr(vT + 4), vr(vT + 4)))
    I("buffer_load_ushort %s, %s, %s, 0 offen" % (vr(vXR), vr(vT + 4), sr(SRD_X, 4)))
    a.label(sk)
    sk = L("arr")
    I("s_cmp_ge_u32 s2, %d" % NCLEAR_WG)
    I("s_cbranch_scc1 %s" % sk)
    I("s_cmp_lg_u32 %s, 0" % sr(S_WW))
    I("s_cbranch_scc1 %s" % sk)
    srd(SRD_DBG, S_PDBG, None, nrec_imm=256)
    I("v_mov_b32 %s, 1" % vr(vT + 5))
    I("s_waitcnt vmcnt(9)")
    exec_set(1, 0)
    I("buffer_atomic_add %s, off, %s, 0" % (vr(vT + 5), sr(SRD_DBG, 4)))
    exec_full()
    a.label(sk)
    I("v_lshlrev_b32 %s, 4, %s" % (vr(vT + 4), vr(vL)))
    I("s_lshl_b32 %s, %s, 12" % (sr(S_T0), sr(S_WW)))
    I("v_add_u32 %s, %s, %s" % (vr(vT + 4), sr(S_T0), vr(vT + 4)))
    for k in range(4):
        I("v_mov_b32 %s, 0" % vr(vG + k))
    for k in range(4):
        I("ds_write_b128 %s, %s offset:%d" % (vr(vT + 4), vr(vG, 4), 1024 * k))
    make_masks(vMASK, vL, vT + 5, vT + 6, vT + 7)
    for w in range(4):
        I("v_and_b32 %s, 0x3f803f80, %s" % (vr(vONES + w), vr(vMASK + w)))
    I("v_mul_u32_u24 %s, 2560, %s" % (vr(vXG), vr(vT + 1)))
    I("v_lshl_add_u32 %s, %s, 4, %s" % (vr(vXG), vr(vT), vr(vXG)))
    I("v_lshl_add_u32 %s, %s, 2, %s" % (vr(vRES), vr(vT), vr(vT + 2)))
    I("v_lshlrev_b32 %s, 2, %s" % (vr(vRES), vr(vRES)))
    I("v_lshrrev_b32 %s, 5, %s" % (vr(vSTA), vr(vL)))
    I("v_lshlrev_b32 %s, 2, %s" % (vr(vSTA), vr(vSTA)))
    I("v_lshlrev_b32 %s, 2, %s" % (vr(vACCW), vr(vL)))
    I("v_lshlrev_b32 %s, 10, %s" % (vr(vOG), vr(vT + 1)))
    I("v_and_b32 %s, 3, %s" % (vr(vT + 5), vr(vL)))
    I("v_lshl_add_u32 %s, %s, 4, %s" % (vr(vOG2), vr(vT + 5), vr(vOG)))
    I("v_add_u32 %s, 128, %s" % (vr(vOG2), vr(vOG2)))
    I("s_mul_i32 %s, %s, 192" % (sr(S_T0), sr(S_WW)))
    I("s_sub_u32 %s, 768, %s" % (sr(S_T0), sr(S_T0)))
    I("v_add_u32 %s, %s, %s" % (vr(vOGS), sr(S_T0), vr(vOG)))
    I("v_lshl_add_u32 %s, %s, 4, %s" % (vr(vOG), vr(vT), vr(vOG)))
    I("v_lshlrev_b32 %s, 9, %s" % (vr(vHG), vr(vT + 1)))
    I("v_bfe_u32 %s, %s, 2, 1" % (vr(vT + 6), vr(vL)))
    I("v_lshl_add_u32 %s, %s, 8, %s" % (vr(vHG), vr(vT + 6), vr(vHG)))
    I("v_lshl_add_u32 %s, %s, 4, %s" % (vr(vHG), vr(vT + 5), vr(vHG)))
    I("v_mov_b32 %s, 0x%x" % (vr(vT + 7), OOB))
    I("v_cmp_gt_u32 vcc, 5, %s" % vr(vT + 1))
    I("v_cndmask_b32 %s, %s, %s, vcc" % (vr(vHG), vr(vT + 7), vr(vHG)))
    I("v_lshlrev_b32 %s, 4, %s" % (vr(vQG), vr(vL)))
    I("v_cmp_gt_u32 vcc, 48, %s" % vr(vL))
    I("v_cndmask_b32 %s, %s, %s, vcc" % (vr(vQG), vr(vT + 7), vr(vQG)))
    srd(SRD_DBG, S_PDBG, None, nrec_imm=256)

    def xgather(nload, base_p, res_p, rho_sreg):
        I("s_lshl_b32 %s, %s, 9" % (sr(S_T0), sr(rho_sreg)))
        I("s_lshl_b32 %s, %s, 7" % (sr(S_T1), sr(S_WW)))
        I("s_add_u32 %s, %s, %s" % (sr(S_T0), sr(S_T0), sr(S_T1)))
        I("s_add_u32 %s, %s, %s" % (sr(S_T5), sr(base_p), sr(S_T0)))
        I("s_add_u32 %s, %s, %s" % (sr(S_T6), sr(res_p), sr(S_T0)))
        lab = poll_begin("xg")
        for k in range(nload):
            if k:
                I("s_add_u32 %s, %s, %d" % (sr(S_T2), sr(S_T5), k * 8 * 2560))
            I("buffer_load_dwordx4 %s, %s, %s, %s offen sc1" % (vr(vG + 4 * k, 4), vr(vXG), sr(SRD_WS, 4), sr(S_T2) if k else sr(S_T5)))
        I("buffer_load_dword %s, %s, %s, %s offen sc1" % (vr(vG + 16), vr(vRES), sr(SRD_WS, 4), sr(S_T6)))
        I("s_waitcnt vmcnt(0)")
        if nload == 4:
            for h in range(2):
                I("v_pk_add_f32 %s, %s, %s" % (vr(vG + 2 * h, 2), vr(vG + 2 * h, 2), vr(vG + 4 + 2 * h, 2)))
                I("v_pk_add_f32 %s, %s, %s" % (vr(vG + 8 + 2 * h, 2), vr(vG + 8 + 2 * h, 2), vr(vG + 12 + 2 * h, 2)))
            for h in range(2):
                I("v_pk_add_f32 %s, %s, %s" % (vr(vG + 2 * h, 2), vr(vG + 2 * h, 2), vr(vG + 8 + 2 * h, 2)))
        elif nload == 3:
            for h in range(2):
                I("v_pk_add_f32 %s, %s, %s" % (vr(vG + 2 * h, 2), vr(vG + 2 * h, 2), vr(vG + 4 + 2 * h, 2)))
            for h in range(2):
                I("v_pk_add_f32 %s, %s, %s" % (vr(vG + 2 * h, 2), vr(vG + 2 * h, 2), vr(vG + 8 + 2 * h, 2)))
        treduce(vG)
        I("v_add_f32 %s, %s, %s" % (vr(vG), vr(vG), vr(vG + 16)))
        poll_end(lab, vG, vG)

    def stats(vx):
        s0, s1, t = vG + 20, vG + 21, vG + 22
        I("v_mul_f32 %s, %s, %s" % (vr(s1), vr(vx), vr(vx)))
        I("v_mov_b32 %s, %s" % (vr(s0), vr(vx)))
        for mod in ("quad_perm:[1,0,3,2]", "quad_perm:[2,3,0,1]", "row_half_mirror"):
            I("v_add_f32_dpp %s, %s, %s %s row_mask:0xf bank_mask:0xf" % (vr(s0), vr(s0), vr(s0), mod))
            I("v_add_f32_dpp %s, %s, %s %s row_mask:0xf bank_mask:0xf" % (vr(s1), vr(s1), vr(s1), mod))
        I("v_permlane32_swap_b32 %s, %s" % (vr(s0), vr(s1)))
        I("v_add_f32 %s, %s, %s" % (vr(s0), vr(s0), vr(s1)))
        I("v_mov_b32 %s, %s" % (vr(t), vr(s0)))
        I("v_permlane16_swap_b32 %s, %s" % (vr(s0), vr(t)))
        I("v_add_f32 %s, %s, %s" % (vr(s0), vr(s0), vr(t)))

    def round_x(vx):
        I("v_cvt_pk_bf16_f32 %s, %s, %s" % (vr(vXB), vr(vx), vr(vx)))
        I("v_and_b32 %s, 0xffff0000, %s" % (vr(vXR), vr(vXB)))

    def ln_stage(tile, acc):
        gemv16(vDW, tile, [(vXB, k) for k in range(8)], vMASK, vA0, vA1)
        stats(vXR)
        sk = L("nos")
        I("s_cmp_lg_u32 %s, 0" % sr(S_P))
        I("s_cbranch_scc1 %s" % sk)
        gemv_ones(vDS, tile, 8, vONES)
        exec_set(0, 0xFFFFFFFF)
        for k in range(4):
            I("v_mov_b32 %s, %s" % (vr(vDW + k), vr(vDS + k)))
        exec_full()
        a.label(sk)

    def acc_add(acc, with_stats):
        for k in range(4):
            I("ds_add_f32 %s, %s offset:%d" % (vr(vACCW), vr(vDW + k), acc + 256 * k))
        if with_stats:
            exec_set(1, 1)
            I("ds_add_f32 %s, %s offset:%d" % (vr(vSTA), vr(vG + 20), acc + 1024))
            exec_full()

    def ln_finish(st):
        I("v_add_f32 %s, %s, %s" % (vr(st), vr(st), vr(st + 2)))
        I("v_add_f32 %s, %s, %s" % (vr(st + 1), vr(st + 1), vr(st + 3)))
        I("v_add_f32 %s, %s, %s" % (vr(st + 4), vr(st + 4), vr(st + 6)))
        I("v_add_f32 %s, %s, %s" % (vr(st + 5), vr(st + 5), vr(st + 7)))
        I("v_add_f32 %s, %s, %s" % (vr(st), vr(st), vr(st + 8)))
        I("v_add_f32 %s, %s, %s" % (vr(st + 1), vr(st + 1), vr(st + 9)))
        I("v_add_f32 %s, %s, %s" % (vr(st), vr(st), vr(st + 4)))
        I("v_add_f32 %s, %s, %s" % (vr(st + 1), vr(st + 1), vr(st + 5)))
        I("v_mul_f32 %s, 0x%x, %s" % (vr(st), f32bits(1.0 / 640), vr(st)))
        I("v_mul_f32 %s, 0x%x, %s" % (vr(st + 1), f32bits(1.0 / 640), vr(st + 1)))
        I("v_fma_f32 %s, -%s, %s, %s" % (vr(st + 1), vr(st), vr(st), vr(st + 1)))
        I("v_add_f32 %s, 0x%x, %s" % (vr(st + 1), f32bits(1e-5), vr(st + 1)))
        I("v_rsq_f32 %s, %s" % (vr(st + 1), vr(st + 1)))

    S_AXD, S_AXR2, S_AXW, S_AXR1 = 84, 85, 86, 87
    S_TMP, S_TMP2 = 88, 89
    I("s_mov_b32 %s, %d" % (sr(S_AXD), XD - XD_P))
    I("s_mov_b32 %s, %d" % (sr(S_AXR2), XR2 - 2560))
    I("s_mov_b32 %s, %d" % (sr(S_AXW), XW))
    I("s_mov_b32 %s, %d" % (sr(S_AXR1), XR1))

    a.label("L_W_LOOP")
    noq = L("noq")
    I("s_cmp_ge_u32 %s, 30" % sr(S_R))
    I("s_cbranch_scc1 %s" % noq)
    x0 = L("x0")
    xr = L("xready")
    I("s_cmp_eq_u32 %s, 0" % sr(S_P))
    I("s_cbranch_scc1 %s" % x0)
    xgather(3, S_AXD, S_AXR2, S_RHOQ)
    I("s_cmp_eq_u32 %s, 2" % sr(S_P))
    I("s_cbranch_scc1 L_FINAL")
    I("s_branch %s" % xr)
    a.label(x0)
    I("s_waitcnt vmcnt(0)")
    I("v_lshlrev_b32 %s, 16, %s" % (vr(vG), vr(vXR)))
    a.label(xr)
    round_x(vG)
    ln_stage(TQ, ACC_Q)
    a.label(noq)
    sk = L("b0")
    I("s_cmp_lg_u32 %s, 0" % sr(S_P))
    I("s_cbranch_scc1 %s" % sk)
    I("s_waitcnt lgkmcnt(0)")
    I("s_barrier")
    a.label(sk)
    sk = L("noqa")
    I("s_cmp_ge_u32 %s, 30" % sr(S_R))
    I("s_cbranch_scc1 %s" % sk)
    acc_add(ACC_Q, True)
    a.label(sk)
    sk = L("gbar")
    I("s_cmp_lg_u32 %s, 0" % sr(S_P))
    I("s_cbranch_scc1 %s" % sk)
    I("s_cmp_lg_u32 %s, 0" % sr(S_WW))
    I("s_cbranch_scc1 %s" % sk)
    I("s_mov_b32 %s, 0x%x" % (sr(S_POLL), POLL_BOUND))
    lab = L("gb")
    dn = L("gbd")
    a.label(lab)
    I("buffer_load_dword %s, off, %s, 0 sc1" % (vr(vG), sr(SRD_DBG, 4)))
    I("s_waitcnt vmcnt(0)")
    I("v_readfirstlane_b32 %s, %s" % (sr(S_T0), vr(vG)))
    I("s_cmp_ge_u32 %s, %d" % (sr(S_T0), NCLEAR_WG))
    I("s_cbranch_scc1 %s" % dn)
    I("s_sub_u32 %s, %s, 1" % (sr(S_POLL), sr(S_POLL)))
    I("s_cbranch_scc0 %s" % lab)
    a.label(dn)
    a.label(sk)
    I("s_waitcnt lgkmcnt(0)")
    I("s_barrier")
    sk = L("xr1")
    I("s_cmp_lg_u32 %s, 0" % sr(S_G))
    I("s_cbranch_scc1 %s" % sk)
    I("s_cmp_lg_u32 %s, 0" % sr(S_CB))
    I("s_cbranch_scc1 %s" % sk)
    I("s_cmp_ge_u32 %s, 30" % sr(S_R))
    I("s_cbranch_scc1 %s" % sk)
    I("s_lshl_b32 %s, %s, 9" % (sr(S_T0), sr(S_RHOQ)))
    I("s_lshl_b32 %s, %s, 7" % (sr(S_T1), sr(S_WW)))
    I("s_add_u32 %s, %s, %s" % (sr(S_T0), sr(S_T0), sr(S_T1)))
    I("s_add_u32 %s, %s, %s" % (sr(S_T0), sr(S_T0), sr(S_AXR1)))
    exec_set(0x00FF00FF, 0x00FF00FF)
    I("buffer_store_dword %s, %s, %s, %s offen sc1" % (vr(vXR), vr(vRES), sr(SRD_WS, 4), sr(S_T0)))
    exec_full()
    a.label(sk)
    sk = L("xcc")
    I("s_cmp_lg_u32 %s, 0" % sr(S_P))
    I("s_cbranch_scc1 %s" % sk)
    I("s_cmp_lg_u32 %s, 2" % sr(S_WW))
    I("s_cbranch_scc1 %s" % sk)
    I("s_getreg_b32 %s, hwreg(HW_REG_XCC_ID, 0, 4)" % sr(S_TMP))
    I("s_lshl_b32 %s, %s, 7" % (sr(S_T0), sr(S_G)))
    I("s_add_u32 %s, %s, %d" % (sr(S_T0), sr(S_T0), XCC))
    I("s_lshl_b32 %s, %s, 2" % (sr(S_T1), sr(S_R)))
    I("s_add_u32 %s, %s, %s" % (sr(S_T1), sr(S_T1), sr(S_T0)))
    I("v_mov_b32 %s, %s" % (vr(vG), sr(S_TMP)))
    exec_set(1, 0)
    I("buffer_store_dword %s, off, %s, %s sc1" % (vr(vG), sr(SRD_WS, 4), sr(S_T1)))
    exec_full()
    I("v_and_b32 %s, 31, %s" % (vr(vG + 1), vr(vL)))
    I("v_lshlrev_b32 %s, 2, %s" % (vr(vG + 1), vr(vG + 1)))
    I("s_mov_b32 %s, 0x%x" % (sr(S_POLL), POLL_BOUND))
    lab = L("xc")
    dn = L("xcd")
    a.label(lab)
    I("buffer_load_dword %s, %s, %s, %s offen sc1" % (vr(vG + 2), vr(vG + 1), sr(SRD_WS, 4), sr(S_T0)))
    I("s_waitcnt vmcnt(0)")
    I("v_cmp_eq_u32 vcc, -1, %s" % vr(vG + 2))
    I("s_cbranch_vccz %s" % dn)
    I("s_sub_u32 %s, %s, 1" % (sr(S_POLL), sr(S_POLL)))
    I("s_cbranch_scc0 %s" % lab)
    a.label(dn)
    I("v_cmp_ne_u32 vcc, %s, %s" % (sr(S_TMP), vr(vG + 2)))
    I("s_cmp_eq_u64 vcc, 0")
    I("s_cselect_b32 %s, 1, 0" % sr(S_T0))
    I("v_mov_b32 %s, %s" % (vr(vG), sr(S_T0)))
    I("v_mov_b32 %s, %d" % (vr(vG + 1), FLAG))
    exec_set(1, 0)
    I("ds_write_b32 %s, %s" % (vr(vG + 1), vr(vG)))
    exec_full()
    a.label(sk)
    sk = L("qg")
    I("s_cmp_lg_u32 %s, 1" % sr(S_WW))
    I("s_cbranch_scc1 %s" % sk)
    I("s_mul_i32 %s, %s, %d" % (sr(S_T0), sr(S_G), 5 * 3072))
    I("s_lshr_b32 %s, %s, 3" % (sr(S_T1), sr(S_R)))
    I("s_mul_i32 %s, %s, 768" % (sr(S_T1), sr(S_T1)))
    I("s_add_u32 %s, %s, %s" % (sr(S_T5), sr(S_T0), sr(S_T1)))
    I("s_lshl_b32 %s, %s, 3" % (sr(S_T0), sr(S_P)))
    I("s_add_u32 %s, %s, %s" % (sr(S_T0), sr(S_T0), sr(S_G)))
    I("s_lshl_b32 %s, %s, 7" % (sr(S_T0), sr(S_T0)))
    I("s_add_u32 %s, %s, %d" % (sr(S_T6), sr(S_T0), QST))
    sk2 = L("qs")
    I("s_cmp_lg_u32 %s, 0" % sr(S_P))
    I("s_cbranch_scc1 %s" % sk2)
    lab = poll_begin("qs")
    for k in range(5):
        I("s_add_u32 %s, %s, %d" % (sr(S_T2), sr(S_T5), QS + k * 3072))
        I("buffer_load_dwordx4 %s, %s, %s, %s offen sc1" % (vr(vG + 4 * k, 4), vr(vQG), sr(SRD_WS, 4), sr(S_T2)))
    I("s_waitcnt vmcnt(0)")
    for h in range(2):
        I("v_pk_add_f32 %s, %s, %s" % (vr(vG + 2 * h, 2), vr(vG + 2 * h, 2), vr(vG + 4 + 2 * h, 2)))
        I("v_pk_add_f32 %s, %s, %s" % (vr(vG + 8 + 2 * h, 2), vr(vG + 8 + 2 * h, 2), vr(vG + 12 + 2 * h, 2)))
    for h in range(2):
        I("v_pk_add_f32 %s, %s, %s" % (vr(vG + 2 * h, 2), vr(vG + 2 * h, 2), vr(vG + 16 + 2 * h, 2)))
    for h in range(2):
        I("v_pk_add_f32 %s, %s, %s" % (vr(vSQ + 2 * h, 2), vr(vG + 2 * h, 2), vr(vG + 8 + 2 * h, 2)))
    I("v_add_f32 %s, %s, %s" % (vr(vG), vr(vSQ), vr(vSQ + 1)))
    I("v_add_f32 %s, %s, %s" % (vr(vG + 1), vr(vSQ + 2), vr(vSQ + 3)))
    poll_end(lab, vG, vG + 1)
    a.label(sk2)
    I("s_mul_i32 %s, %s, %d" % (sr(S_T0), sr(S_P), QP_P))
    I("s_add_u32 %s, %s, %s" % (sr(S_T5), sr(S_T5), sr(S_T0)))
    if QP:
        I("s_add_u32 %s, %s, %d" % (sr(S_T5), sr(S_T5), QP))
    lab = poll_begin("qt")
    for k in range(5):
        if k:
            I("s_add_u32 %s, %s, %d" % (sr(S_T2), sr(S_T5), k * 3072))
        I("buffer_load_dwordx4 %s, %s, %s, %s offen sc1" % (vr(vG + 4 * k, 4), vr(vQG), sr(SRD_WS, 4), sr(S_T2) if k else sr(S_T5)))
    ST = vG + 20
    I("buffer_load_dwordx4 %s, off, %s, %s sc1" % (vr(ST, 4), sr(SRD_WS, 4), sr(S_T6)))
    I("buffer_load_dwordx4 %s, off, %s, %s offset:16 sc1" % (vr(ST + 4, 4), sr(SRD_WS, 4), sr(S_T6)))
    I("buffer_load_dwordx2 %s, off, %s, %s offset:32 sc1" % (vr(ST + 8, 2), sr(SRD_WS, 4), sr(S_T6)))
    I("s_waitcnt vmcnt(0)")
    for h in range(2):
        I("v_pk_add_f32 %s, %s, %s" % (vr(vG + 2 * h, 2), vr(vG + 2 * h, 2), vr(vG + 4 + 2 * h, 2)))
        I("v_pk_add_f32 %s, %s, %s" % (vr(vG + 8 + 2 * h, 2), vr(vG + 8 + 2 * h, 2), vr(vG + 12 + 2 * h, 2)))
    ln_finish(ST)
    for h in range(2):
        I("v_pk_add_f32 %s, %s, %s" % (vr(vG + 2 * h, 2), vr(vG + 2 * h, 2), vr(vG + 16 + 2 * h, 2)))
    for h in range(2):
        I("v_pk_add_f32 %s, %s, %s" % (vr(vG + 2 * h, 2), vr(vG + 2 * h, 2), vr(vG + 8 + 2 * h, 2)))
    for k in range(4):
        I("v_fma_f32 %s, -%s, %s, %s" % (vr(vG + k), vr(ST), vr(vSQ + k), vr(vG + k)))
    for k in range(4):
        I("v_mul_f32 %s, %s, %s" % (vr(vG + k), vr(vG + k), vr(ST + 1)))
    I("v_add_f32 %s, %s, %s" % (vr(vG + 4), vr(vG), vr(vG + 1)))
    I("v_add_f32 %s, %s, %s" % (vr(vG + 5), vr(vG + 2), vr(vG + 3)))
    poll_end(lab, vG + 4, vG + 5)
    I("v_cvt_pk_bf16_f32 %s, %s, %s" % (vr(vG + 4), vr(vG), vr(vG + 1)))
    I("v_cvt_pk_bf16_f32 %s, %s, %s" % (vr(vG + 5), vr(vG + 2), vr(vG + 3)))
    I("s_mul_i32 %s, %s, 384" % (sr(S_T0), sr(S_P)))
    I("v_lshlrev_b32 %s, 3, %s" % (vr(vG + 6), vr(vL)))
    I("v_add_u32 %s, %s, %s" % (vr(vG + 6), sr(S_T0), vr(vG + 6)))
    exec_set(0xFFFFFFFF, 0xFFFF)
    I("ds_write_b64 %s, %s offset:%d" % (vr(vG + 6), vr(vG + 4, 2), QBUF))
    exec_full()
    a.label(sk)
    I("s_waitcnt lgkmcnt(0)")
    I("s_barrier")
    sk = L("wl")
    I("s_cmp_lg_u32 %s, 0" % sr(S_P))
    I("s_cbranch_scc1 %s" % sk)
    I("v_lshrrev_b32 %s, 4, %s" % (vr(vT + 2), vr(vL)))
    I("v_and_b32 %s, 15, %s" % (vr(vT + 3), vr(vL)))
    nowo = L("nowo")
    I("s_cmp_lt_u32 %s, 12" % sr(S_R))
    I("s_cbranch_scc1 %s" % nowo)
    I("s_mul_i32 %s, %s, 768" % (sr(S_T0), sr(S_G)))
    I("s_mul_i32 %s, %s, 192" % (sr(S_T1), sr(S_HW)))
    I("s_add_u32 %s, %s, %s" % (sr(S_T0), sr(S_T0), sr(S_T1)))
    I("s_mul_i32 %s, %s, 48" % (sr(S_T1), sr(S_WW)))
    I("s_add_u32 %s, %s, %s" % (sr(S_T0), sr(S_T0), sr(S_T1)))
    I("s_mul_i32 %s, %s, 1280" % (sr(S_T0), sr(S_T0)))
    I("s_lshl_b32 %s, %s, 8" % (sr(S_T1), sr(S_JW)))
    I("s_add_u32 %s, %s, %s" % (sr(S_T0), sr(S_T0), sr(S_T1)))
    srd(SRD_WO, S_PWO, S_T0, total=6144 * 640 * 2)
    I("v_mul_u32_u24 %s, 1280, %s" % (vr(vW16), vr(vT + 2)))
    I("v_lshl_add_u32 %s, %s, 4, %s" % (vr(vW16), vr(vT + 3), vr(vW16)))
    for k in range(12):
        if k:
            I("s_mov_b32 %s, %d" % (sr(S_T2), k * 4 * 1280))
        I("buffer_load_dwordx4 %s, %s, %s, %s offen%s" % (vr(TWO + 4 * k, 4), vr(vW16), sr(SRD_WO, 4), sr(S_T2) if k else "0", nt))
    a.label(nowo)
    nogu = L("nogu")
    I("s_cmp_ge_u32 %s, 15" % sr(S_R))
    I("s_cbranch_scc1 %s" % nogu)
    I("s_lshl_b32 %s, %s, 7" % (sr(S_T0), sr(S_JG)))
    I("s_lshl_b32 %s, %s, 5" % (sr(S_T1), sr(S_WW)))
    I("s_add_u32 %s, %s, %s" % (sr(S_T0), sr(S_T0), sr(S_T1)))
    I("s_mul_i32 %s, %s, 3072" % (sr(S_T0), sr(S_T0)))
    I("s_mul_i32 %s, %s, 384" % (sr(S_T1), sr(S_G)))
    I("s_add_u32 %s, %s, %s" % (sr(S_T0), sr(S_T0), sr(S_T1)))
    I("s_lshl_b32 %s, %s, 7" % (sr(S_T1), sr(S_HB)))
    I("s_add_u32 %s, %s, %s" % (sr(S_T0), sr(S_T0), sr(S_T1)))
    srd(SRD_G, S_PG, S_T0, total=640 * 1536 * 2)
    srd(SRD_U, S_PU, S_T0, total=640 * 1536 * 2)
    I("v_mul_u32_u24 %s, 3072, %s" % (vr(vW16), vr(vT + 2)))
    I("v_and_b32 %s, 7, %s" % (vr(vT + 4), vr(vL)))
    I("v_lshl_add_u32 %s, %s, 4, %s" % (vr(vW16), vr(vT + 4), vr(vW16)))
    for (srdn, m) in ((SRD_G, 0x00FF00FF), (SRD_U, 0xFF00FF00)):
        exec_set(m, m)
        for k in range(8):
            if k:
                I("s_mov_b32 %s, %d" % (sr(S_T2), k * 4 * 3072))
            I("buffer_load_dwordx4 %s, %s, %s, %s offen%s" % (vr(TGU + 4 * k, 4), vr(vW16), sr(srdn, 4), sr(S_T2) if k else "0", nt))
    exec_full()
    I("s_mul_i32 %s, %s, 192" % (sr(S_T0), sr(S_G)))
    I("s_lshl_b32 %s, %s, 6" % (sr(S_T1), sr(S_HB)))
    I("s_add_u32 %s, %s, %s" % (sr(S_T0), sr(S_T0), sr(S_T1)))
    I("s_lshl_b32 %s, %s, 4" % (sr(S_T1), sr(S_WW)))
    I("s_add_u32 %s, %s, %s" % (sr(S_T0), sr(S_T0), sr(S_T1)))
    I("s_mul_i32 %s, %s, 1280" % (sr(S_T0), sr(S_T0)))
    I("s_lshl_b32 %s, %s, 8" % (sr(S_T1), sr(S_JG)))
    I("s_add_u32 %s, %s, %s" % (sr(S_T0), sr(S_T0), sr(S_T1)))
    srd(SRD_D, S_PD, S_T0, total=1536 * 640 * 2)
    I("v_mul_u32_u24 %s, 1280, %s" % (vr(vW16), vr(vT + 2)))
    I("v_lshl_add_u32 %s, %s, 4, %s" % (vr(vW16), vr(vT + 3), vr(vW16)))
    for k in range(4):
        if k:
            I("s_mov_b32 %s, %d" % (sr(S_T2), k * 4 * 1280))
        I("buffer_load_dwordx4 %s, %s, %s, %s offen%s" % (vr(TDN + 4 * k, 4), vr(vW16), sr(SRD_D, 4), sr(S_T2) if k else "0", nt))
    a.label(nogu)
    a.label(sk)
    I("s_barrier")
    I("s_barrier")
    nowo = L("nowo2")
    I("s_cmp_lt_u32 %s, 12" % sr(S_R))
    I("s_cbranch_scc1 %s" % nowo)
    I("s_lshl_b32 %s, %s, 2" % (sr(S_T0), sr(S_G)))
    I("s_add_u32 %s, %s, %s" % (sr(S_T0), sr(S_T0), sr(S_HW)))
    I("s_lshl_b32 %s, %s, 13" % (sr(S_T0), sr(S_T0)))
    I("s_mul_i32 %s, %s, 192" % (sr(S_T1), sr(S_WW)))
    I("s_add_u32 %s, %s, %s" % (sr(S_T0), sr(S_T0), sr(S_T1)))
    I("s_mul_i32 %s, %s, %d" % (sr(S_T1), sr(S_P), OP_P))
    I("s_add_u32 %s, %s, %s" % (sr(S_T0), sr(S_T0), sr(S_T1)))
    I("s_add_u32 %s, %s, %d" % (sr(S_T5), sr(S_T0), OP))
    lab = poll_begin("og")
    oa, ob, ost = vG, vG + 4, vG + 8
    I("buffer_load_dwordx2 %s, %s, %s, %s offen sc1" % (vr(ost, 2), vr(vOGS), sr(SRD_WS, 4), sr(S_T5)))
    I("buffer_load_dwordx4 %s, %s, %s, %s offen sc1" % (vr(oa, 4), vr(vOG), sr(SRD_WS, 4), sr(S_T5)))
    I("buffer_load_dwordx4 %s, %s, %s, %s offen sc1" % (vr(ob, 4), vr(vOG2), sr(SRD_WS, 4), sr(S_T5)))
    I("s_waitcnt vmcnt(0)")
    om, ot, oe = vG + 10, vG + 11, vG + 12
    I("v_mov_b32 %s, %s" % (vr(om), vr(ost)))
    allred345("v_max_f32", om, ot)
    I("v_sub_f32 %s, %s, %s" % (vr(oe), vr(ost), vr(om)))
    I("v_exp_f32 %s, %s" % (vr(oe), vr(oe)))
    I("v_mul_f32 %s, %s, %s" % (vr(om), vr(oe), vr(ost + 1)))
    for k in range(4):
        I("v_mul_f32 %s, %s, %s" % (vr(oa + k), vr(oa + k), vr(oe)))
    for k in range(4):
        I("v_mul_f32 %s, %s, %s" % (vr(ob + k), vr(ob + k), vr(oe)))
    allred345("v_add_f32", om, ot)
    I("v_rcp_f32 %s, %s" % (vr(om), vr(om)))
    treduce(oa)
    treduce(ob)
    I("v_mul_f32 %s, %s, %s" % (vr(oa), vr(oa), vr(om)))
    I("v_mul_f32 %s, %s, %s" % (vr(ob), vr(ob), vr(om)))
    poll_end(lab, oa, ob)
    I("v_cvt_pk_bf16_f32 %s, %s, %s" % (vr(vXB), vr(oa), vr(oa)))
    I("v_cvt_pk_bf16_f32 %s, %s, %s" % (vr(vXB2), vr(ob), vr(ob)))
    gemv16(vDW, TWO, [(vXB, k) for k in range(8)] + [(vXB2, k) for k in range(4)], vMASK, vA0, vA1)
    acc_add(ACC_WO, False)
    a.label(nowo)
    I("s_waitcnt lgkmcnt(0)")
    I("s_barrier")
    nogu = L("nogu2")
    I("s_cmp_ge_u32 %s, 15" % sr(S_R))
    I("s_cbranch_scc1 %s" % nogu)
    xgather(4, S_AXW, S_AXR1, S_JG)
    round_x(vG)
    sk = L("xr2")
    I("s_cmp_lg_u32 %s, 0" % sr(S_G))
    I("s_cbranch_scc1 %s" % sk)
    I("s_cmp_lg_u32 %s, 0" % sr(S_HB))
    I("s_cbranch_scc1 %s" % sk)
    I("s_lshl_b32 %s, %s, 9" % (sr(S_T0), sr(S_JG)))
    I("s_lshl_b32 %s, %s, 7" % (sr(S_T1), sr(S_WW)))
    I("s_add_u32 %s, %s, %s" % (sr(S_T0), sr(S_T0), sr(S_T1)))
    I("s_add_u32 %s, %s, %s" % (sr(S_T0), sr(S_T0), sr(S_AXR2)))
    I("s_add_u32 %s, %s, 2560" % (sr(S_T0), sr(S_T0)))
    exec_set(0x00FF00FF, 0x00FF00FF)
    I("buffer_store_dword %s, %s, %s, %s offen sc1" % (vr(vXR), vr(vRES), sr(SRD_WS, 4), sr(S_T0)))
    exec_full()
    a.label(sk)
    ln_stage(TGU, ACC_GU)
    acc_add(ACC_GU, True)
    a.label(nogu)
    I("s_waitcnt lgkmcnt(0)")
    I("s_barrier")
    nodn = L("nodn")
    I("s_cmp_ge_u32 %s, 15" % sr(S_R))
    I("s_cbranch_scc1 %s" % nodn)
    I("s_mul_i32 %s, %s, 3" % (sr(S_T0), sr(S_G)))
    I("s_add_u32 %s, %s, %s" % (sr(S_T0), sr(S_T0), sr(S_HB)))
    I("s_mul_i32 %s, %s, 2560" % (sr(S_T5), sr(S_T0)))
    I("s_lshl_b32 %s, %s, 6" % (sr(S_T1), sr(S_WW)))
    I("s_add_u32 %s, %s, %s" % (sr(S_T5), sr(S_T5), sr(S_T1)))
    I("s_mul_i32 %s, %s, 24" % (sr(S_T1), sr(S_P)))
    I("s_add_u32 %s, %s, %s" % (sr(S_T0), sr(S_T0), sr(S_T1)))
    I("s_lshl_b32 %s, %s, 7" % (sr(S_T0), sr(S_T0)))
    I("s_add_u32 %s, %s, %d" % (sr(S_T6), sr(S_T0), GST))
    sk2 = L("hs")
    I("s_cmp_lg_u32 %s, 0" % sr(S_P))
    I("s_cbranch_scc1 %s" % sk2)
    I("s_add_u32 %s, %s, %d" % (sr(S_T2), sr(S_T5), GS))
    lab = poll_begin("hs")
    I("buffer_load_dwordx4 %s, %s, %s, %s offen sc1" % (vr(vG, 4), vr(vHG), sr(SRD_WS, 4), sr(S_T2)))
    I("s_waitcnt vmcnt(0)")
    treduce(vG)
    I("v_mov_b32 %s, %s" % (vr(vSH), vr(vG)))
    poll_end(lab, vG, vG)
    a.label(sk2)
    I("s_mul_i32 %s, %s, %d" % (sr(S_T0), sr(S_P), GP_P))
    I("s_add_u32 %s, %s, %s" % (sr(S_T5), sr(S_T5), sr(S_T0)))
    I("s_add_u32 %s, %s, %d" % (sr(S_T5), sr(S_T5), GP))
    lab = poll_begin("hg")
    ST = vG + 20
    I("buffer_load_dwordx4 %s, off, %s, %s sc1" % (vr(ST, 4), sr(SRD_WS, 4), sr(S_T6)))
    I("buffer_load_dwordx4 %s, off, %s, %s offset:16 sc1" % (vr(ST + 4, 4), sr(SRD_WS, 4), sr(S_T6)))
    I("buffer_load_dwordx2 %s, off, %s, %s offset:32 sc1" % (vr(ST + 8, 2), sr(SRD_WS, 4), sr(S_T6)))
    I("buffer_load_dwordx4 %s, %s, %s, %s offen sc1" % (vr(vG, 4), vr(vHG), sr(SRD_WS, 4), sr(S_T5)))
    I("s_waitcnt vmcnt(0)")
    ln_finish(ST)
    treduce(vG)
    I("v_fma_f32 %s, -%s, %s, %s" % (vr(vG), vr(ST), vr(vSH), vr(vG)))
    I("v_mul_f32 %s, %s, %s" % (vr(vG), vr(vG), vr(ST + 1)))
    I("v_mul_f32_dpp %s, %s, %s row_ror:4 row_mask:0xf bank_mask:0xf" % (vr(vG + 1), vr(vG), vr(vG)))
    poll_end(lab, vG + 1, vG + 1)
    I("v_cvt_pk_bf16_f32 %s, %s, %s" % (vr(vXB), vr(vG + 1), vr(vG + 1)))
    gemv16(vDW, TDN, [(vXB, k) for k in range(4)], vMASK, vA0, vA1)
    acc_add(ACC_DN, False)
    a.label(nodn)
    I("s_waitcnt lgkmcnt(0)")
    I("s_barrier")
    I("s_add_u32 %s, %s, 1" % (sr(S_P), sr(S_P)))
    I("s_add_u32 %s, %s, %d" % (sr(S_AXD), sr(S_AXD), XD_P))
    I("s_add_u32 %s, %s, 2560" % (sr(S_AXR2), sr(S_AXR2)))
    I("s_add_u32 %s, %s, %d" % (sr(S_AXW), sr(S_AXW), XW_P))
    I("s_add_u32 %s, %s, 2560" % (sr(S_AXR1), sr(S_AXR1)))
    I("v_add_u32 %s, %d, %s" % (vr(vSTA), ACC_P, vr(vSTA)))
    I("v_add_u32 %s, %d, %s" % (vr(vACCW), ACC_P, vr(vACCW)))
    I("s_cmp_lt_u32 %s, 2" % sr(S_P))
    I("s_cbranch_scc1 L_W_LOOP")
    I("s_cmp_lg_u32 %s, 0" % sr(S_G))
    I("s_cbranch_scc1 L_END")
    I("s_cmp_lg_u32 %s, 0" % sr(S_CB))
    I("s_cbranch_scc1 L_END")
    I("s_cmp_ge_u32 %s, 30" % sr(S_R))
    I("s_cbranch_scc1 L_END")
    I("s_branch L_W_LOOP")
    a.label("L_FINAL")
    srd(SRD_OUT, S_POUT, None, nrec_imm=1280)
    I("v_cvt_pk_bf16_f32 %s, %s, %s" % (vr(vXB), vr(vG), vr(vG)))
    I("s_lshl_b32 %s, %s, 8" % (sr(S_T0), sr(S_RHOQ)))
    I("s_lshl_b32 %s, %s, 6" % (sr(S_T1), sr(S_WW)))
    I("s_add_u32 %s, %s, %s" % (sr(S_T0), sr(S_T0), sr(S_T1)))
    I("v_lshrrev_b32 %s, 1, %s" % (vr(vT), vr(vRES)))
    exec_set(0x00FF00FF, 0x00FF00FF)
    I("buffer_store_short %s, %s, %s, %s offen" % (vr(vXB), vr(vT), sr(SRD_OUT, 4), sr(S_T0)))
    exec_full()
    a.label("L_END")
    I("s_endpgm")

    a.raw(".section .rodata,\"a\"")
    a.raw(".p2align 6")
    a.raw(".amdhsa_kernel %s" % kern)
    a.raw("  .amdhsa_next_free_vgpr 256")
    a.raw("  .amdhsa_next_free_sgpr 102")
    a.raw("  .amdhsa_accum_offset 256")
    a.raw("  .amdhsa_group_segment_fixed_size 0")
    a.raw("  .amdhsa_kernarg_size 96")
    a.raw("  .amdhsa_user_sgpr_count 2")
    a.raw("  .amdhsa_user_sgpr_kernarg_segment_ptr 1")
    a.raw("  .amdhsa_system_sgpr_workgroup_id_x 1")
    a.raw(".end_amdhsa_kernel")

    head = open("cdna_kernels/%s.s.ref" % NAME).read().split("; Override launch")[0]
    head += "; Override launch geometry by editing the next line (default: block=256,\n"
    head += "; grid=ceil(out_elems/256), lds=0). Harness parses it; keep it on one line.\n"
    head += "; @launch grid=(256,1,1) block=(512,1,1) lds=%d\n" % LDS_BYTES
    return head + a.text(), a


if __name__ == "__main__":
    opt = Opt()
    out = "cdna_kernels/%s.s" % NAME
    for arg in sys.argv[1:]:
        if arg.startswith("out="):
            out = arg[4:]
        else:
            k, v = arg.split("=")
            setattr(opt, k, type(getattr(opt, k))(int(v)))
    txt, a = gen(opt)
    open(out, "w").write(txt)
    print("wrote", out, "instructions:", a.ninstr)
```
